```python
import torch

def _softmax(x, axis=-1):
    return torch.softmax(x, dim=axis)
def _gelu(x):
    return torch.nn.functional.gelu(x, approximate="tanh")
def _silu(x):
    return torch.nn.functional.silu(x)
def _sigmoid(x):
    return torch.sigmoid(x)
def _layernorm(x, axis=-1, eps=1e-5):
    m = x.mean(dim=axis, keepdim=True)
    v = x.var(dim=axis, keepdim=True, unbiased=False)
    return (x - m) / torch.sqrt(v + eps)
def _scatter_add(tgt, idx, src, axis=0):
    return tgt.clone().index_add_(axis, idx, src)
def _segment_sum(src, seg, n):
    out = torch.zeros((n,) + src.shape[1:], dtype=src.dtype)
    return out.index_add_(0, seg, src)
def _pad(x, pw):
    flat = tuple(v for pair in reversed(pw) for v in pair)
    return torch.nn.functional.pad(x, flat)

kernel_name = 'gated_mix__sliding_block_cached__geglu_ffn__decode'

def setup_inputs():

    _w = (lambda a: (lambda t: t.to(torch.bfloat16) if t.is_floating_point() else t)(torch.as_tensor(a)))
    def _A_setup():
        B, Sq, D = 8, 1, 640
        Hq, Hkv, Sk, Dh = 32, 32, 4096, 192
        assert Hq % Hkv == 0, (Hq, Hkv)
        return {
            "x": _w((lambda *s: torch.randn(*s, dtype=torch.bfloat16) * 0.05)(B, Sq, D)),
            "k_cache": _w((lambda *s: torch.randn(*s, dtype=torch.bfloat16) * 6.4)(B, Hkv, Sk, Dh)),
            "v_cache": _w((lambda *s: torch.randn(*s, dtype=torch.bfloat16) * 0.2)(B, Hkv, Sk, Dh)),
            "wq": _w((lambda *s: torch.randn(*s, dtype=torch.bfloat16) * 6.4)(D, Hq * Dh) * (D ** -0.5)),
            "wo": _w((lambda *s: torch.randn(*s, dtype=torch.bfloat16) * 0.2)(Hq * Dh, D) * ((Hq * Dh) ** -0.5)),
        }
    _A_in = _A_setup()

    def _B_setup():
        B, S, D, F = 8, 1, 640, 1536
        return {
            "x": _w((lambda *s: torch.randn(*s, dtype=torch.bfloat16) * 0.05)(B, S, D)),
            "w_gate": _w((lambda *s: torch.randn(*s, dtype=torch.bfloat16) * 0.05)(D, F)),
            "w_up": _w((lambda *s: torch.randn(*s, dtype=torch.bfloat16) * 0.05)(D, F)),
            "w_down": _w((lambda *s: torch.randn(*s, dtype=torch.bfloat16) * 0.05)(F, D)),
        }
    _B_in = _B_setup()

    return {
        "A_x": _A_in["x"],
        "A_k_cache": _A_in["k_cache"],
        "A_v_cache": _A_in["v_cache"],
        "A_wq": _A_in["wq"],
        "A_wo": _A_in["wo"],
        "B_x": _B_in["x"],
        "B_w_gate": _B_in["w_gate"],
        "B_w_up": _B_in["w_up"],
        "B_w_down": _B_in["w_down"],
        "gate_w": _w((lambda *s: torch.randn(*s, dtype=torch.bfloat16) * 0.05)(640) * 16.0),
    }

def reference(A_x, A_k_cache, A_v_cache, A_wq, A_wo, B_x, B_w_gate, B_w_up, B_w_down, gate_w):
    def _A_ref(x, k_cache, v_cache, wq, wo):
        B, Sq, D = x.shape
        Hq, Dh = 32, 192
        Hkv, Sk = k_cache.shape[1], k_cache.shape[2]
        W = min(4096, max(256, Sk // 4))
        rep = Hq // Hkv
        q = (lambda x, *d: x.permute(*d))((x @ wq).reshape(B, Sq, Hq, Dh), 0, 2, 1, 3)
        k = (lambda x, n, axis: torch.repeat_interleave(x, n, dim=axis))(k_cache[:, :, Sk - W:, :], rep, axis=1)
        v = (lambda x, n, axis: torch.repeat_interleave(x, n, dim=axis))(v_cache[:, :, Sk - W:, :], rep, axis=1)
        scores = torch.einsum("bhqd,bhkd->bhqk", q, k) * (Dh ** -0.5)
        p = _softmax(scores, axis=-1)
        o = torch.einsum("bhqk,bhkd->bhqd", p, v)
        return (lambda x, *d: x.permute(*d))(o, 0, 2, 1, 3).reshape(B, Sq, Hq * Dh) @ wo

    def _B_ref(x, w_gate, w_up, w_down):
        return (_gelu(x @ w_gate) * (x @ w_up)) @ w_down

    x = A_x
    g = _sigmoid((x * gate_w).sum(-1, keepdims=True))
    a = _A_ref(x, A_k_cache, A_v_cache, A_wq, A_wo)
    b = _B_ref(x, B_w_gate, B_w_up, B_w_down)
    return g * a + (1 - g) * b
```

```python
import struct, sys, copy

def f32bits(x):
    return struct.unpack("<I", struct.pack("<f", x))[0]

SCALE = f32bits(192 ** -0.5)
LOG2E = f32bits(1.4426950408889634)

MAIN = "gated_mix__sliding_block_cached__geglu_ffn__decode_kernel"
FINAL = "gm_final_kernel"

N_ATT = 256
N_FFN = 192
FFN_OFF = 256 * 640 * 4

class G:
    def __init__(self):
        self.L = []
        self.vmq = []
    def e(self, s):
        self.L.append("  " + s)
    def c(self, s):
        self.L.append("  ; " + s)
    def label(self, s):
        self.L.append(s + ":")
    def vm(self, s, tag):
        self.e(s)
        self.vmq.append(tag)
    def wait_tag(self, tag):
        if tag not in self.vmq:
            return
        idx = max(i for i, t in enumerate(self.vmq) if t == tag)
        n = len(self.vmq) - 1 - idx
        assert n <= 63
        self.e(f"s_waitcnt vmcnt({n})")
        self.vmq = self.vmq[idx + 1:]
    def wait_all_vm(self):
        self.e("s_waitcnt vmcnt(0)")
        self.vmq = []

V_TID = 0
V_R, V_C, V_W = 1, 2, 3
V_OFFQ, V_OFFKV, V_OFFO = 4, 5, 6
V_OFFX = 7
V_LDSW = 8
V_LDSC = 9
V_LDSR = 10
V_M, V_LSUM = 11, 12
V_T2 = 13
ACC = 16
P = 40
X = 56
T = 80
SLOT0 = 96
NSLOT = 6
SLOTSZ = 24
NVGPR = SLOT0 + NSLOT * SLOTSZ

def slot_reg(s, k):
    return SLOT0 + s * SLOTSZ + k

S_X, S_K, S_V, S_WQ, S_WO, S_BX, S_WG, S_WU = 4, 6, 8, 10, 12, 14, 16, 18
S_WD, S_GW, S_OUT, S_DBG, S_WS = 20, 22, 24, 26, 28
S_B, S_H, S_TMP, S_TMP2 = 30, 31, 32, 33
S_PQ, S_PU, S_PK, S_PV, S_PO = 34, 36, 38, 40, 42
S_PXB = 44
S_PST = 46
S_WAVE = 48
S_SCALE, S_LOG2E = 49, 50
S_EXSV = 52
NSGPR = 56

L_QPART = 0
L_STATS = 3072
L_OPART = 4096
L_OSUM = 7168
L_GPART = 0
L_UPART = 1024
L_HID = 2048
LDS_MAIN = 8192


def add64(g, pair, imm):
    g.e(f"s_add_u32 s{pair}, s{pair}, {imm}")
    g.e(f"s_addc_u32 s{pair+1}, s{pair+1}, 0")

def base64(g, dst, src, soff):
    g.e(f"s_add_u32 s{dst}, s{src}, s{soff}")
    g.e(f"s_addc_u32 s{dst+1}, s{src+1}, 0")


def allreduce_r(g, regs, op="add"):
    ins = {"add": "v_add_f32", "max": "v_max_f32"}[op]
    g.e("s_nop 3")
    for r in regs:
        g.e(f"{ins}_dpp v{r}, v{r}, v{r} row_ror:8 row_mask:0xf bank_mask:0xf")
    for sw in ("v_permlane16_swap_b32", "v_permlane32_swap_b32"):
        for i in range(0, len(regs), 8):
            chunk = regs[i:i + 8]
            for k, r in enumerate(chunk):
                g.e(f"v_mov_b32 v{T+k}, v{r}")
            if len(chunk) < 3:
                g.e("s_nop 1")
            for k, r in enumerate(chunk):
                g.e(f"{sw} v{r}, v{T+k}")
            if len(chunk) < 3:
                g.e("s_nop 1")
            for k, r in enumerate(chunk):
                g.e(f"{ins} v{r}, v{r}, v{T+k}")


def zero_regs(g, regs):
    for r in regs:
        g.e(f"v_mov_b32 v{r}, 0")


class Stream:
    def __init__(self, g):
        self.g = g
        self.steps = []
        self.issue_order = []
        self.issued = 0
        self.slot_of = {}
        self.free = list(range(NSLOT))
    def add(self, name, issue, consume):
        self.steps.append(dict(name=name, issue=issue, consume=consume))
    def set_issue_order(self, names):
        self.issue_order = names
    def issue_next(self):
        if self.issued >= len(self.issue_order):
            return
        name = self.issue_order[self.issued]
        st = next(s for s in self.steps if s["name"] == name)
        slot = self.free.pop(0)
        self.slot_of[name] = slot
        self.g.c(f"issue {name} -> slot {slot}")
        st["issue"](slot)
        self.issued += 1
    def fill(self):
        while self.free and self.issued < len(self.issue_order):
            self.issue_next()
    def consume(self, name):
        st = next(s for s in self.steps if s["name"] == name)
        slot = self.slot_of[name]
        self.g.c(f"consume {name} (slot {slot})")
        self.g.wait_tag(name)
        st["consume"](slot)
        self.free.append(slot)
        self.issue_next()


def issue_rows3(g, tag, pair, voff, flags, adv_group, adv_slot):
    def f(slot):
        for hf in range(2):
            for t in range(3):
                r = slot_reg(slot, 12 * hf + 4 * t)
                if adv_group is None:
                    off = t * 128 + hf * 3072
                    g.vm(f"global_load_dwordx4 v[{r}:{r+3}], v{voff}, s[{pair}:{pair+1}] offset:{off} {flags}".rstrip(), tag)
                else:
                    g.vm(f"global_load_dwordx4 v[{r}:{r+3}], v{voff}, s[{pair}:{pair+1}] offset:{t*128} {flags}".rstrip(), tag)
            if adv_group is not None:
                add64(g, pair, adv_group)
        if adv_slot:
            add64(g, pair, adv_slot)
    return f


def gemv_group(g, slot, base_k, nld, accs, mlo, mhi):
    for t in range(nld):
        for q in range(4):
            r = slot_reg(slot, base_k + 4 * t + q)
            g.e(f"v_dot2c_f32_bf16 v{accs[8*t+2*q]}, v{r}, v{mlo}")
            g.e(f"v_dot2c_f32_bf16 v{accs[8*t+2*q+1]}, v{r}, v{mhi}")


def write_part(g, regs, nt, lds_base, wave_stride):
    g.e("s_mov_b64 exec, 0xff")
    for t in range(nt):
        for hf in range(2):
            r = regs[8 * t + 4 * hf]
            g.e(f"ds_write_b128 v{V_LDSW}, v[{r}:{r+3}] offset:{lds_base + 256*t + 16*hf}")
    g.e("s_mov_b64 exec, -1")


def o_phase(g, st, nblocks, groups_per_slot, slots_per_block, tagp, mult_base, store_fn):
    names = []
    for bi in range(nblocks):
        for sb in range(slots_per_block):
            name = f"{tagp}{bi}_{sb}"
            def issue(slot, bi=bi, sb=sb, name=name):
                if sb == 0:
                    g.e(f"s_add_u32 s{S_PST}, s{S_PO}, {bi*512}")
                    g.e(f"s_addc_u32 s{S_PST+1}, s{S_PO+1}, 0")
                for q in range(groups_per_slot):
                    r = slot_reg(slot, 4 * q)
                    g.vm(f"global_load_dwordx4 v[{r}:{r+3}], v{V_OFFO}, s[{S_PST}:{S_PST+1}]", name)
                    add64(g, S_PST, 10240)
            def consume(slot, bi=bi, sb=sb):
                accs = [ACC + 8 * bi + k for k in range(8)]
                for q in range(groups_per_slot):
                    m = mult_base + sb * groups_per_slot + q
                    g.e(f"v_cvt_pk_bf16_f32 v{T}, v{m}, 0")
                    g.e(f"v_cvt_pk_bf16_f32 v{T+1}, 0, v{m}")
                    gemv_group(g, slot, 4 * q, 1, accs, T, T + 1)
                if sb == slots_per_block - 1:
                    allreduce_r(g, accs)
                    store_fn(bi, accs)
            st.add(name, issue, consume)
            names.append(name)
    return names


def gen_main():
    g = G()
    e = g.e
    g.label(MAIN)
    e("s_load_dwordx16 s[4:19], s[0:1], 0")
    e("s_load_dwordx8 s[20:27], s[0:1], 64")
    e("s_load_dwordx2 s[28:29], s[0:1], 96")
    e(f"s_cmp_ge_u32 s2, {N_ATT+N_FFN}")
    e("s_cbranch_scc1 L_end")
    e(f"v_and_b32 v{T}, 63, v0")
    e(f"v_lshrrev_b32 v{V_W}, 6, v0")
    e(f"v_lshrrev_b32 v{V_R}, 3, v{T}")
    e(f"v_and_b32 v{V_C}, 7, v{T}")
    e(f"s_mov_b32 s{S_SCALE}, {SCALE:#x}")
    e(f"s_mov_b32 s{S_LOG2E}, {LOG2E:#x}")
    e(f"v_mul_u32_u24 v{T+1}, 160, v{V_W}")
    e(f"v_add_u32 v{T+1}, v{T+1}, v{V_R}")
    e(f"v_lshlrev_b32 v{V_OFFX}, 1, v{T+1}")
    e(f"v_lshlrev_b32 v{T+2}, 4, v{V_C}")
    e(f"v_lshlrev_b32 v{V_LDSC}, 5, v{V_C}")
    e(f"v_lshlrev_b32 v{V_LDSR}, 2, v{V_R}")
    e(f"v_mul_u32_u24 v{V_OFFO}, 1280, v{V_R}")
    e(f"v_add_u32 v{V_OFFO}, v{V_OFFO}, v{T+2}")
    e(f"v_lshlrev_b32 v{T+3}, 7, v{V_W}")
    e(f"v_add_u32 v{V_OFFO}, v{V_OFFO}, v{T+3}")
    zero_regs(g, range(ACC, ACC + 24))
    e("s_waitcnt lgkmcnt(0)")
    e(f"s_cmp_ge_u32 s2, {N_ATT}")
    e("s_cbranch_scc1 L_ffn")

    g.c("---- attention workgroup")
    e(f"s_lshr_b32 s{S_B}, s2, 5")
    e(f"s_and_b32 s{S_H}, s2, 31")
    e(f"s_mul_i32 s{S_TMP}, s{S_B}, 1280")
    base64(g, S_PXB, S_X, S_TMP)
    e(f"s_mul_i32 s{S_TMP}, s{S_H}, 384")
    base64(g, S_PQ, S_WQ, S_TMP)
    e(f"s_mul_i32 s{S_TMP}, s2, 1572864")
    e(f"s_add_u32 s{S_TMP}, s{S_TMP}, 1179648")
    base64(g, S_PK, S_K, S_TMP)
    base64(g, S_PV, S_V, S_TMP)
    e(f"s_mul_i32 s{S_TMP}, s{S_H}, 245760")
    base64(g, S_PO, S_WO, S_TMP)
    e(f"v_mul_u32_u24 v{V_OFFQ}, 12288, v{T+1}")
    e(f"v_add_u32 v{V_OFFQ}, v{V_OFFQ}, v{T+2}")
    e(f"v_mul_u32_u24 v{V_OFFKV}, 98304, v{V_W}")
    e(f"v_mul_u32_u24 v{T+3}, 384, v{V_R}")
    e(f"v_add_u32 v{V_OFFKV}, v{V_OFFKV}, v{T+3}")
    e(f"v_add_u32 v{V_OFFKV}, v{V_OFFKV}, v{T+2}")
    e(f"v_mul_u32_u24 v{V_LDSW}, 768, v{V_W}")
    e(f"v_add_u32 v{V_LDSW}, v{V_LDSW}, v{V_LDSC}")
    for m in range(20):
        g.vm(f"global_load_ushort v{X+m}, v{V_OFFX}, s[{S_PXB}:{S_PXB+1}] offset:{16*m}", "x")

    st = Stream(g)
    accs = [ACC + k for k in range(24)]
    for n in range(10):
        def consume_q(slot, n=n):
            for hf in range(2):
                e(f"v_lshlrev_b32 v{T}, 16, v{X+2*n+hf}")
                gemv_group(g, slot, 12 * hf, 3, accs, X + 2 * n + hf, T)
        st.add(f"Q{n}", issue_rows3(g, f"Q{n}", S_PQ, V_OFFQ, "", 98304, 0), consume_q)
    QR = [X + k for k in range(12)]
    for n in range(16):
        def consume_k(slot, n=n):
            for q in range(4):
                for hf in range(2):
                    for t in range(3):
                        r = slot_reg(slot, 12 * hf + 4 * t + q)
                        d = T + 3 * hf + t
                        if q == 0:
                            e(f"v_dot2_f32_bf16 v{d}, v{r}, v{QR[4*t+q]}, 0")
                        else:
                            e(f"v_dot2c_f32_bf16 v{d}, v{r}, v{QR[4*t+q]}")
            e("s_nop 2")
            for hf in range(2):
                e(f"v_add_f32 v{T+3*hf}, v{T+3*hf}, v{T+3*hf+1}")
            for hf in range(2):
                e(f"v_add_f32 v{T+3*hf}, v{T+3*hf}, v{T+3*hf+2}")
            e("s_nop 0")
            for perm in ("quad_perm:[1,0,3,2]", "quad_perm:[2,3,0,1]", "row_half_mirror"):
                for hf in range(2):
                    e(f"v_add_f32_dpp v{T+3*hf}, v{T+3*hf}, v{T+3*hf} {perm} row_mask:0xf bank_mask:0xf")
                e("s_nop 0")
            for hf in range(2):
                e(f"v_cvt_pk_bf16_f32 v{T+3*hf}, v{T+3*hf}, v{T+3*hf}")
            for hf in range(2):
                e(f"v_lshlrev_b32 v{T+3*hf}, 16, v{T+3*hf}")
            for hf in range(2):
                e(f"v_mul_f32 v{T+3*hf}, s{S_SCALE}, v{T+3*hf}")
            e(f"v_cvt_pk_bf16_f32 v{P+n}, v{T}, v{T+3}")
        st.add(f"K{n}", issue_rows3(g, f"K{n}", S_PK, V_OFFKV, "nt", None, 6144), consume_k)
    for n in range(16):
        def consume_v(slot, n=n):
            e(f"v_and_b32 v{T}, 0xffff, v{P+n}")
            e(f"v_lshlrev_b32 v{T+1}, 16, v{P+n}")
            e(f"v_lshrrev_b32 v{T+2}, 16, v{P+n}")
            e(f"v_and_b32 v{T+3}, 0xffff0000, v{P+n}")
            gemv_group(g, slot, 0, 3, accs, T, T + 1)
            gemv_group(g, slot, 12, 3, accs, T + 2, T + 3)
        st.add(f"V{n}", issue_rows3(g, f"V{n}", S_PV, V_OFFKV, "nt", None, 6144), consume_v)

    order = [f"Q{n}" for n in range(4)] + ["K0", "K1"] + [f"Q{n}" for n in range(4, 10)] \
        + [f"K{n}" for n in range(2, 16)] + [f"V{n}" for n in range(16)]
    st.set_issue_order(order)
    st.fill()
    for n in range(10):
        st.consume(f"Q{n}")
    g.c("q reduce")
    allreduce_r(g, accs)
    write_part(g, accs, 3, L_QPART, 768)
    e("s_waitcnt lgkmcnt(0)")
    e("s_barrier")
    for t in range(3):
        tmp = [ACC + k for k in range(24)] + [T + k for k in range(8)]
        for hf in range(2):
            for w in range(4):
                r = tmp[16 * hf + 4 * w]
                e(f"ds_read_b128 v[{r}:{r+3}], v{V_LDSC} offset:{L_QPART + 768*w + 256*t + 16*hf}")
        e("s_waitcnt lgkmcnt(0)")
        for hf in range(2):
            for k in range(4):
                a, b_, c_, d = (tmp[16 * hf + 4 * w + k] for w in range(4))
                e(f"v_add_f32 v{a}, v{a}, v{b_}")
                e(f"v_add_f32 v{c_}, v{c_}, v{d}")
            for k in range(4):
                a, c_ = tmp[16 * hf + k], tmp[16 * hf + 8 + k]
                e(f"v_add_f32 v{a}, v{a}, v{c_}")
            a = tmp[16 * hf]
            e(f"v_cvt_pk_bf16_f32 v{QR[4*t+2*hf]}, v{a}, v{a+1}")
            e(f"v_cvt_pk_bf16_f32 v{QR[4*t+2*hf+1]}, v{a+2}, v{a+3}")
    zero_regs(g, range(ACC, ACC + 24))
    for n in range(16):
        st.consume(f"K{n}")
    g.c("softmax")
    e(f"v_lshlrev_b32 v{T}, 16, v{P}")
    e(f"v_and_b32 v{T+1}, 0xffff0000, v{P}")
    e(f"v_max_f32 v{V_M}, v{T}, v{T+1}")
    for n in range(1, 16):
        e(f"v_lshlrev_b32 v{T}, 16, v{P+n}")
        e(f"v_and_b32 v{T+1}, 0xffff0000, v{P+n}")
        e(f"v_max3_f32 v{V_M}, v{V_M}, v{T}, v{T+1}")
    allreduce_r(g, [V_M], "max")
    e(f"v_mov_b32 v{V_LSUM}, 0")
    for n in range(16):
        e(f"v_lshlrev_b32 v{T}, 16, v{P+n}")
        e(f"v_and_b32 v{T+1}, 0xffff0000, v{P+n}")
        e(f"v_sub_f32 v{T}, v{T}, v{V_M}")
        e(f"v_sub_f32 v{T+1}, v{T+1}, v{V_M}")
        e(f"v_mul_f32 v{T}, s{S_LOG2E}, v{T}")
        e(f"v_mul_f32 v{T+1}, s{S_LOG2E}, v{T+1}")
        e(f"v_exp_f32 v{T}, v{T}")
        e(f"v_exp_f32 v{T+1}, v{T+1}")
        e("s_nop 0")
        e(f"v_add_f32 v{V_LSUM}, v{V_LSUM}, v{T}")
        e(f"v_add_f32 v{V_LSUM}, v{V_LSUM}, v{T+1}")
    allreduce_r(g, [V_LSUM])
    e(f"v_mov_b32 v{T}, v{V_M}")
    e(f"v_mov_b32 v{T+1}, v{V_LSUM}")
    e(f"v_lshlrev_b32 v{T+2}, 3, v{V_W}")
    e("s_mov_b64 exec, 1")
    e(f"ds_write_b64 v{T+2}, v[{T}:{T+1}] offset:{L_STATS}")
    e("s_mov_b64 exec, -1")
    e("s_waitcnt lgkmcnt(0)")
    e("s_barrier")
    e(f"v_mov_b32 v{T+8}, 0")
    e(f"ds_read_b128 v[{T}:{T+3}], v{T+8} offset:{L_STATS}")
    e(f"ds_read_b128 v[{T+4}:{T+7}], v{T+8} offset:{L_STATS+16}")
    e("s_waitcnt lgkmcnt(0)")
    e(f"v_max3_f32 v{V_T2}, v{T}, v{T+2}, v{T+4}")
    e(f"v_max_f32 v{V_T2}, v{V_T2}, v{T+6}")
    for k in (0, 2, 4, 6):
        e(f"v_sub_f32 v{T+k}, v{T+k}, v{V_T2}")
        e(f"v_mul_f32 v{T+k}, s{S_LOG2E}, v{T+k}")
        e(f"v_exp_f32 v{T+k}, v{T+k}")
    e("s_nop 0")
    e(f"v_mul_f32 v{V_LSUM}, v{T}, v{T+1}")
    e(f"v_fmac_f32 v{V_LSUM}, v{T+2}, v{T+3}")
    e(f"v_fmac_f32 v{V_LSUM}, v{T+4}, v{T+5}")
    e(f"v_fmac_f32 v{V_LSUM}, v{T+6}, v{T+7}")
    e(f"v_rcp_f32 v{V_LSUM}, v{V_LSUM}")
    e(f"v_mov_b32 v{V_M}, v{V_T2}")
    for n in range(16):
        e(f"v_lshlrev_b32 v{T}, 16, v{P+n}")
        e(f"v_and_b32 v{T+1}, 0xffff0000, v{P+n}")
        e(f"v_sub_f32 v{T}, v{T}, v{V_M}")
        e(f"v_sub_f32 v{T+1}, v{T+1}, v{V_M}")
        e(f"v_mul_f32 v{T}, s{S_LOG2E}, v{T}")
        e(f"v_mul_f32 v{T+1}, s{S_LOG2E}, v{T+1}")
        e(f"v_exp_f32 v{T}, v{T}")
        e(f"v_exp_f32 v{T+1}, v{T+1}")
        e("s_nop 0")
        e(f"v_mul_f32 v{T}, v{T}, v{V_LSUM}")
        e(f"v_mul_f32 v{T+1}, v{T+1}, v{V_LSUM}")
        e(f"v_cvt_pk_bf16_f32 v{P+n}, v{T}, v{T+1}")
    e(f"s_mul_i32 s{S_TMP}, s2, 2560")
    base64(g, S_PQ, S_WS, S_TMP)
    def store_att(bi, accs):
        e(f"v_lshlrev_b32 v{T}, 8, v{V_W}")
        e(f"v_add_u32 v{T}, v{T}, v{V_LDSC}")
        e("s_mov_b64 exec, 0xff")
        g.vm(f"global_store_dwordx4 v{T}, v[{accs[0]}:{accs[3]}], s[{S_PQ}:{S_PQ+1}] offset:{bi*1024}", "st")
        g.vm(f"global_store_dwordx4 v{T}, v[{accs[4]}:{accs[7]}], s[{S_PQ}:{S_PQ+1}] offset:{bi*1024+16}", "st")
        e("s_mov_b64 exec, -1")
    OM = [X + k for k in range(24)]
    onames = o_phase(g, st, 3, 6, 4, "O", X, store_att)
    st.issue_order = st.issue_order + onames[:8]
    st.fill()
    for n in range(16):
        st.consume(f"V{n}")
    g.c("o reduce")
    allreduce_r(g, accs)
    write_part(g, accs, 3, L_OPART, 768)
    e("s_waitcnt lgkmcnt(0)")
    e("s_barrier")
    e(f"v_lshlrev_b32 v{T}, 2, v0")
    e("v_cmp_gt_u32 vcc, 192, v0")
    e(f"s_and_saveexec_b64 s[{S_EXSV}:{S_EXSV+1}], vcc")
    for w in range(4):
        e(f"ds_read_b32 v{T+1+w}, v{T} offset:{L_OPART + 768*w}")
    e("s_waitcnt lgkmcnt(0)")
    e(f"v_add_f32 v{T+1}, v{T+1}, v{T+2}")
    e(f"v_add_f32 v{T+3}, v{T+3}, v{T+4}")
    e(f"v_add_f32 v{T+1}, v{T+1}, v{T+3}")
    e(f"ds_write_b32 v{T}, v{T+1} offset:{L_OSUM}")
    e(f"s_mov_b64 exec, s[{S_EXSV}:{S_EXSV+1}]")
    e("s_waitcnt lgkmcnt(0)")
    e("s_barrier")
    for m in range(24):
        e(f"ds_read_b32 v{OM[m]}, v{V_LDSR} offset:{L_OSUM + 32*m}")
    zero_regs(g, range(ACC, ACC + 24))
    e("s_waitcnt lgkmcnt(0)")
    e(f"v_readfirstlane_b32 s{S_WAVE}, v{V_W}")
    e("s_nop 3")
    e(f"s_cmp_ge_u32 s{S_WAVE}, 2")
    e("s_cbranch_scc1 L_att_b")
    gA = g
    gB = G(); gB.L = []; gB.vmq = list(g.vmq)
    stB = copy.copy(st)
    stA_state = (list(st.free), dict(st.slot_of), st.issued, list(st.issue_order))
    st.issue_order = st.issue_order + onames[8:]
    for nm in onames:
        st.consume(nm)
    e("s_branch L_end")
    g.label("L_att_b")
    st.free, st.slot_of, st.issued, st.issue_order = list(stA_state[0]), dict(stA_state[1]), stA_state[2], list(stA_state[3])
    g.vmq = list(gB.vmq)
    for nm in onames[:8]:
        st.consume(nm)
    e("s_branch L_end")

    g.label("L_ffn")
    g.vmq = []
    g.c("---- FFN workgroup (b, j)")
    e(f"s_sub_u32 s{S_TMP}, s2, {N_ATT}")
    e(f"s_mul_i32 s{S_B}, s{S_TMP}, 43691")
    e(f"s_lshr_b32 s{S_B}, s{S_B}, 20")
    e(f"s_mul_i32 s{S_TMP2}, s{S_B}, 24")
    e(f"s_sub_u32 s{S_H}, s{S_TMP}, s{S_TMP2}")
    e(f"s_mul_i32 s{S_TMP}, s{S_B}, 1280")
    base64(g, S_PXB, S_X, S_TMP)
    e(f"s_mul_i32 s{S_TMP}, s{S_H}, 128")
    base64(g, S_PQ, S_WG, S_TMP)
    base64(g, S_PU, S_WU, S_TMP)
    e(f"s_mul_i32 s{S_TMP}, s{S_H}, 81920")
    base64(g, S_PO, S_WD, S_TMP)
    e(f"v_mul_u32_u24 v{V_OFFQ}, 3072, v{T+1}")
    e(f"v_add_u32 v{V_OFFQ}, v{V_OFFQ}, v{T+2}")
    e(f"v_mul_u32_u24 v{V_LDSW}, 256, v{V_W}")
    e(f"v_add_u32 v{V_LDSW}, v{V_LDSW}, v{V_LDSC}")
    for m in range(20):
        g.vm(f"global_load_ushort v{X+m}, v{V_OFFX}, s[{S_PXB}:{S_PXB+1}] offset:{16*m}", "x")
    st = Stream(g)
    for n in range(10):
        def issue_f1(slot, n=n):
            for hf in range(2):
                r = slot_reg(slot, 4 * hf)
                g.vm(f"global_load_dwordx4 v[{r}:{r+3}], v{V_OFFQ}, s[{S_PQ}:{S_PQ+1}]", f"F{n}")
                r = slot_reg(slot, 8 + 4 * hf)
                g.vm(f"global_load_dwordx4 v[{r}:{r+3}], v{V_OFFQ}, s[{S_PU}:{S_PU+1}]", f"F{n}")
                add64(g, S_PQ, 24576)
                add64(g, S_PU, 24576)
        def consume_f1(slot, n=n):
            for hf in range(2):
                e(f"v_lshlrev_b32 v{T}, 16, v{X+2*n+hf}")
                gemv_group(g, slot, 4 * hf, 1, [ACC + k for k in range(8)], X + 2 * n + hf, T)
                gemv_group(g, slot, 8 + 4 * hf, 1, [ACC + 8 + k for k in range(8)], X + 2 * n + hf, T)
        st.add(f"F{n}", issue_f1, consume_f1)
    e(f"s_lshl_b32 s{S_TMP}, s{S_H}, 3")
    e(f"s_add_u32 s{S_TMP}, s{S_TMP}, s{S_B}")
    e(f"s_mul_i32 s{S_TMP}, s{S_TMP}, 2560")
    e(f"s_add_u32 s{S_TMP}, s{S_TMP}, {FFN_OFF}")
    base64(g, S_PK, S_WS, S_TMP)
    def store_ffn(bi, accs):
        e(f"v_lshlrev_b32 v{T}, 8, v{V_W}")
        e(f"v_add_u32 v{T}, v{T}, v{V_LDSC}")
        e("s_mov_b64 exec, 0xff")
        g.vm(f"global_store_dwordx4 v{T}, v[{accs[0]}:{accs[3]}], s[{S_PK}:{S_PK+1}] offset:{bi*1024}", "st")
        g.vm(f"global_store_dwordx4 v{T}, v[{accs[4]}:{accs[7]}], s[{S_PK}:{S_PK+1}] offset:{bi*1024+16}", "st")
        e("s_mov_b64 exec, -1")
    fnames = o_phase(g, st, 3, 4, 2, "D", X, store_ffn)
    st.set_issue_order([f"F{n}" for n in range(10)] + fnames[:4])
    st.fill()
    for n in range(10):
        st.consume(f"F{n}")
    g.c("ffn reduce")
    allreduce_r(g, [ACC + k for k in range(16)])
    e("s_mov_b64 exec, 0xff")
    for hf in range(2):
        e(f"ds_write_b128 v{V_LDSW}, v[{ACC+4*hf}:{ACC+4*hf+3}] offset:{L_GPART + 16*hf}")
        e(f"ds_write_b128 v{V_LDSW}, v[{ACC+8+4*hf}:{ACC+8+4*hf+3}] offset:{L_UPART + 16*hf}")
    e("s_mov_b64 exec, -1")
    e("s_waitcnt lgkmcnt(0)")
    e("s_barrier")
    e(f"v_lshlrev_b32 v{T}, 2, v0")
    e("v_cmp_gt_u32 vcc, 64, v0")
    e(f"s_and_saveexec_b64 s[{S_EXSV}:{S_EXSV+1}], vcc")
    for w in range(4):
        e(f"ds_read_b32 v{T+1+w}, v{T} offset:{L_GPART + 256*w}")
        e(f"ds_read_b32 v{T+5+w}, v{T} offset:{L_UPART + 256*w}")
    e("s_waitcnt lgkmcnt(0)")
    e(f"v_add_f32 v{T+1}, v{T+1}, v{T+2}")
    e(f"v_add_f32 v{T+3}, v{T+3}, v{T+4}")
    e(f"v_add_f32 v{T+5}, v{T+5}, v{T+6}")
    e(f"v_add_f32 v{T+7}, v{T+7}, v{T+8}")
    e(f"v_add_f32 v{T+1}, v{T+1}, v{T+3}")
    e(f"v_add_f32 v{T+5}, v{T+5}, v{T+7}")
    e(f"v_cvt_pk_bf16_f32 v{T+2}, v{T+1}, v{T+5}")
    e(f"v_lshlrev_b32 v{T+1}, 16, v{T+2}")
    e(f"v_and_b32 v{T+5}, 0xffff0000, v{T+2}")
    e(f"v_mul_f32 v{T+2}, v{T+1}, v{T+1}")
    e(f"v_mul_f32 v{T+2}, v{T+2}, v{T+1}")
    e(f"v_mov_b32 v{T+3}, {f32bits(0.044715):#x}")
    e(f"v_fma_f32 v{T+2}, v{T+3}, v{T+2}, v{T+1}")
    e(f"v_mul_f32 v{T+2}, {f32bits(0.7978845608028654):#x}, v{T+2}")
    e(f"v_mul_f32 v{T+2}, {f32bits(2*1.4426950408889634):#x}, v{T+2}")
    e(f"v_exp_f32 v{T+2}, v{T+2}")
    e("s_nop 0")
    e(f"v_add_f32 v{T+2}, 1.0, v{T+2}")
    e(f"v_rcp_f32 v{T+2}, v{T+2}")
    e("s_nop 0")
    e(f"v_fma_f32 v{T+2}, -2.0, v{T+2}, 2.0")
    e(f"v_mul_f32 v{T+3}, 0.5, v{T+1}")
    e(f"v_mul_f32 v{T+2}, v{T+3}, v{T+2}")
    e(f"v_cvt_pk_bf16_f32 v{T+2}, v{T+2}, v{T+2}")
    e(f"v_lshlrev_b32 v{T+2}, 16, v{T+2}")
    e(f"v_mul_f32 v{T+2}, v{T+2}, v{T+5}")
    e(f"v_cvt_pk_bf16_f32 v{T+2}, v{T+2}, v{T+2}")
    e(f"v_lshlrev_b32 v{T+2}, 16, v{T+2}")
    e(f"ds_write_b32 v{T}, v{T+2} offset:{L_HID}")
    e(f"s_mov_b64 exec, s[{S_EXSV}:{S_EXSV+1}]")
    e("s_waitcnt lgkmcnt(0)")
    e("s_barrier")
    for m in range(8):
        e(f"ds_read_b32 v{X+m}, v{V_LDSR} offset:{L_HID + 32*m}")
    zero_regs(g, range(ACC, ACC + 24))
    e("s_waitcnt lgkmcnt(0)")
    e(f"v_readfirstlane_b32 s{S_WAVE}, v{V_W}")
    e("s_nop 3")
    e(f"s_cmp_ge_u32 s{S_WAVE}, 2")
    e("s_cbranch_scc1 L_ffn_b")
    saved = (list(st.free), dict(st.slot_of), st.issued, list(st.issue_order), list(g.vmq))
    st.issue_order = st.issue_order + fnames[4:]
    st.fill()
    for nm in fnames:
        st.consume(nm)
    e("s_branch L_end")
    g.label("L_ffn_b")
    st.free, st.slot_of, st.issued, st.issue_order, g.vmq = list(saved[0]), dict(saved[1]), saved[2], list(saved[3]), list(saved[4])
    for nm in fnames[:4]:
        st.consume(nm)
    g.label("L_end")
    e("s_endpgm")
    return g


def gen_final():
    g = G()
    e = g.e
    g.label(FINAL)
    e("s_load_dwordx2 s[4:5], s[0:1], 0")
    e("s_load_dwordx2 s[6:7], s[0:1], 72")
    e("s_load_dwordx2 s[8:9], s[0:1], 80")
    e("s_load_dwordx2 s[10:11], s[0:1], 96")
    e("s_cmp_ge_u32 s2, 40")
    e("s_cbranch_scc1 L_fend")
    e("s_mul_i32 s12, s2, 52429")
    e("s_lshr_b32 s12, s12, 18")
    e("s_mul_i32 s13, s12, 5")
    e("s_sub_u32 s13, s2, s13")
    e("v_and_b32 v1, 31, v0")
    e("v_lshrrev_b32 v2, 5, v0")
    e("v_and_b32 v3, 63, v0")
    e("s_waitcnt lgkmcnt(0)")
    e("s_mul_i32 s14, s12, 1280")
    e("s_add_u32 s4, s4, s14")
    e("s_addc_u32 s5, s5, 0")
    e("v_lshlrev_b32 v4, 5, v3")
    e("v_mov_b32 v20, 0")
    e("v_cmp_gt_u32 vcc, 40, v3")
    e("s_and_saveexec_b64 s[16:17], vcc")
    e("global_load_dwordx4 v[8:11], v4, s[4:5]")
    e("global_load_dwordx4 v[12:15], v4, s[4:5] offset:16")
    e("global_load_dwordx4 v[16:19], v4, s[6:7]")
    e("global_load_dwordx4 v[24:27], v4, s[6:7] offset:16")
    e("s_mov_b64 exec, s[16:17]")
    e("s_mul_i32 s14, s12, 81920")
    e("s_lshl_b32 s15, s13, 9")
    e("s_add_u32 s14, s14, s15")
    e("s_add_u32 s18, s10, s14")
    e("s_addc_u32 s19, s11, 0")
    e("v_mul_u32_u24 v5, 10240, v2")
    e("v_lshlrev_b32 v6, 4, v1")
    e("v_add_u32 v5, v5, v6")
    e("global_load_dwordx4 v[32:35], v5, s[18:19]")
    e("global_load_dwordx4 v[36:39], v5, s[18:19] offset:2560")
    e("v_add_u32 v7, 5120, v5")
    e("global_load_dwordx4 v[40:43], v7, s[18:19]")
    e("global_load_dwordx4 v[44:47], v7, s[18:19] offset:2560")
    e(f"s_mul_i32 s14, s12, 2560")
    e("s_add_u32 s14, s14, s15")
    e(f"s_add_u32 s14, s14, {FFN_OFF}")
    e("s_add_u32 s20, s10, s14")
    e("s_addc_u32 s21, s11, 0")
    e("v_mul_u32_u24 v5, 61440, v2")
    e("v_add_u32 v5, v5, v6")
    e("global_load_dwordx4 v[48:51], v5, s[20:21]")
    e("v_add_u32 v7, 20480, v5")
    e("global_load_dwordx4 v[52:55], v7, s[20:21]")
    e("v_add_u32 v7, 40960, v5")
    e("global_load_dwordx4 v[56:59], v7, s[20:21]")
    e("s_waitcnt vmcnt(7)")
    e("s_and_saveexec_b64 s[16:17], vcc")
    for k in range(8):
        xr = (8 + k) if k < 4 else (12 + k - 4)
        wr = (16 + k) if k < 4 else (24 + k - 4)
        e(f"v_lshlrev_b32 v21, 16, v{xr}")
        e(f"v_lshlrev_b32 v22, 16, v{wr}")
        e(f"v_mul_f32 v21, v21, v22")
        e(f"v_and_b32 v22, 0xffff0000, v{xr}")
        e(f"v_and_b32 v23, 0xffff0000, v{wr}")
        e(f"v_mul_f32 v22, v22, v23")
        e(f"v_cvt_pk_bf16_f32 v21, v21, v22")
        e(f"v_lshlrev_b32 v22, 16, v21")
        e(f"v_and_b32 v21, 0xffff0000, v21")
        e(f"v_add_f32 v20, v20, v22")
        e(f"v_add_f32 v20, v20, v21")
    e("s_mov_b64 exec, s[16:17]")
    e("s_nop 1")
    for sh in (8, 4, 2, 1):
        e(f"v_add_f32_dpp v20, v20, v20 row_ror:{sh} row_mask:0xf bank_mask:0xf")
        e("s_nop 1")
    e("v_readlane_b32 s22, v20, 0")
    e("v_readlane_b32 s23, v20, 16")
    e("v_readlane_b32 s24, v20, 32")
    e("v_readlane_b32 s25, v20, 48")
    e("s_nop 1")
    e("v_mov_b32 v20, s22")
    e("v_add_f32 v20, s23, v20")
    e("v_add_f32 v20, s24, v20")
    e("v_add_f32 v20, s25, v20")
    e("v_cvt_pk_bf16_f32 v20, v20, v20")
    e("v_lshlrev_b32 v20, 16, v20")
    e(f"v_mul_f32 v21, {f32bits(-1.4426950408889634):#x}, v20")
    e("v_exp_f32 v21, v21")
    e("s_nop 0")
    e("v_add_f32 v21, 1.0, v21")
    e("v_rcp_f32 v21, v21")
    e("s_nop 0")
    e("v_cvt_pk_bf16_f32 v21, v21, v21")
    e("v_lshlrev_b32 v28, 16, v21")
    e("v_sub_f32 v21, 1.0, v28")
    e("v_cvt_pk_bf16_f32 v21, v21, v21")
    e("v_lshlrev_b32 v29, 16, v21")
    e("s_waitcnt vmcnt(0)")
    for k in range(4):
        e(f"v_add_f32 v{32+k}, v{32+k}, v{36+k}")
        e(f"v_add_f32 v{40+k}, v{40+k}, v{44+k}")
        e(f"v_add_f32 v{48+k}, v{48+k}, v{52+k}")
    for k in range(4):
        e(f"v_add_f32 v{32+k}, v{32+k}, v{40+k}")
        e(f"v_add_f32 v{48+k}, v{48+k}, v{56+k}")
    e("v_lshlrev_b32 v5, 9, v2")
    e("v_add_u32 v5, v5, v6")
    e("ds_write_b128 v5, v[32:35]")
    e("ds_write_b128 v5, v[48:51] offset:4096")
    e("s_waitcnt lgkmcnt(0)")
    e("s_barrier")
    e("v_cmp_gt_u32 vcc, 128, v0")
    e("s_and_saveexec_b64 s[16:17], vcc")
    e("s_cbranch_execz L_fend")
    e("v_lshlrev_b32 v5, 2, v0")
    for p in range(8):
        e(f"ds_read_b32 v{32+p}, v5 offset:{512*p}")
        e(f"ds_read_b32 v{40+p}, v5 offset:{4096+512*p}")
    e("s_waitcnt lgkmcnt(0)")
    for base in (32, 40):
        e(f"v_add_f32 v{base}, v{base}, v{base+1}")
        e(f"v_add_f32 v{base+2}, v{base+2}, v{base+3}")
        e(f"v_add_f32 v{base+4}, v{base+4}, v{base+5}")
        e(f"v_add_f32 v{base+6}, v{base+6}, v{base+7}")
        e(f"v_add_f32 v{base}, v{base}, v{base+2}")
        e(f"v_add_f32 v{base+4}, v{base+4}, v{base+6}")
        e(f"v_add_f32 v{base}, v{base}, v{base+4}")
    e("v_cvt_pk_bf16_f32 v33, v32, v40")
    e("v_lshlrev_b32 v32, 16, v33")
    e("v_and_b32 v40, 0xffff0000, v33")
    e("v_mul_f32 v32, v28, v32")
    e("v_mul_f32 v40, v29, v40")
    e("v_cvt_pk_bf16_f32 v33, v32, v40")
    e("v_lshlrev_b32 v32, 16, v33")
    e("v_and_b32 v40, 0xffff0000, v33")
    e("v_add_f32 v32, v32, v40")
    e("v_cvt_pk_bf16_f32 v32, v32, v32")
    e("s_mul_i32 s14, s12, 1280")
    e("s_lshl_b32 s15, s13, 8")
    e("s_add_u32 s14, s14, s15")
    e("s_add_u32 s8, s8, s14")
    e("s_addc_u32 s9, s9, 0")
    e("v_lshlrev_b32 v5, 1, v0")
    e("global_store_short v5, v32, s[8:9]")
    g.label("L_fend")
    e("s_endpgm")
    return g


HEADER = """; Kernarg layout for this problem (104 bytes, ptrs only, base s[0:1]):
"""

def kd(name, nv, ns):
    return f""".amdhsa_kernel {name}
  .amdhsa_next_free_vgpr {nv}
  .amdhsa_next_free_sgpr {ns}
  .amdhsa_accum_offset {(nv+3)//4*4}
  .amdhsa_group_segment_fixed_size 0
  .amdhsa_kernarg_size 104
  .amdhsa_user_sgpr_count 2
  .amdhsa_user_sgpr_kernarg_segment_ptr 1
  .amdhsa_system_sgpr_workgroup_id_x 1
  .amdhsa_float_denorm_mode_32 3
  .amdhsa_float_denorm_mode_16_64 3
.end_amdhsa_kernel
"""

def main(out):
    gm = gen_main()
    gf = gen_final()
    s = HEADER
    s += f"; @launch kernel={MAIN} grid=({N_ATT+N_FFN},1,1) block=(256,1,1) lds={LDS_MAIN}\n"
    s += f"; @launch kernel={FINAL} grid=(40,1,1) block=(256,1,1) lds=8192\n"
    s += '.amdgcn_target "amdgcn-amd-amdhsa--gfx950"\n.text\n'
    s += f".globl {MAIN}\n.p2align 8\n.type {MAIN},@function\n"
    s += "\n".join(gm.L) + "\n"
    s += f".globl {FINAL}\n.p2align 8\n.type {FINAL},@function\n"
    s += "\n".join(gf.L) + "\n"
    s += '.section .rodata,"a"\n.p2align 6\n'
    s += kd(MAIN, NVGPR, NSGPR)
    s += ".p2align 6\n"
    s += kd(FINAL, 64, 32)
    open(out, "w").write(s)
    print("wrote", out, "lines:", s.count("\n"))

if __name__ == "__main__":
    main(sys.argv[1] if len(sys.argv) > 1 else "out.s")
```

```python
import struct, sys, copy

def f32bits(x):
    return struct.unpack("<I", struct.pack("<f", x))[0]

SCALE = f32bits(192 ** -0.5)
LOG2E = f32bits(1.4426950408889634)

MAIN = "gated_mix__sliding_block_cached__geglu_ffn__decode_kernel"
FINAL = "gm_final_kernel"

import os
WFLAGS = os.environ.get("GM_WFLAGS", "")
STAMPS = int(os.environ.get("GM_STAMPS", "0"))
NOFFN = int(os.environ.get("GM_NOFFN", "0"))
NOATT = int(os.environ.get("GM_NOATT", "0"))
N_ATT = 256
N_FFN = 192
FFN_OFF = 256 * 640 * 4

class G:
    def __init__(self):
        self.L = []
        self.vmq = []
    def e(self, s):
        self.L.append("  " + s)
    def c(self, s):
        self.L.append("  ; " + s)
    def label(self, s):
        self.L.append(s + ":")
    def vm(self, s, tag):
        self.e(s)
        self.vmq.append(tag)
    def wait_tag(self, tag):
        if tag not in self.vmq:
            return
        idx = max(i for i, t in enumerate(self.vmq) if t == tag)
        n = len(self.vmq) - 1 - idx
        assert n <= 63
        self.e(f"s_waitcnt vmcnt({n})")
        self.vmq = self.vmq[idx + 1:]
    def wait_all_vm(self):
        self.e("s_waitcnt vmcnt(0)")
        self.vmq = []

V_TID = 0
V_R, V_C, V_W = 1, 2, 3
V_OFFQ, V_OFFKV, V_OFFO = 4, 5, 6
V_OFFX = 7
V_LDSW = 8
V_LDSC = 9
V_LDSR = 10
V_M, V_LSUM = 11, 12
V_T2 = 13
ACC = 16
P = 40
X = 56
T = 80
SLOT0 = 96
NSLOT = 6
SLOTSZ = 24
NVGPR = SLOT0 + NSLOT * SLOTSZ

def slot_reg(s, k):
    return SLOT0 + s * SLOTSZ + k

def set_layout(name):
    global ACC, P, X, T, SLOT0, NSLOT, SLOTSZ
    if name == "att":
        ACC, P, X, T, SLOT0, NSLOT, SLOTSZ = 16, 40, 56, 80, 96, 6, 24
    else:
        ACC, P, X, T, SLOT0, NSLOT, SLOTSZ = 16, 40, 40, 60, 80, 10, 16

S_X, S_K, S_V, S_WQ, S_WO, S_BX, S_WG, S_WU = 4, 6, 8, 10, 12, 14, 16, 18
S_WD, S_GW, S_OUT, S_DBG, S_WS = 20, 22, 24, 26, 28
S_B, S_H, S_TMP, S_TMP2 = 30, 31, 32, 33
S_PQ, S_PU, S_PK, S_PV, S_PO = 34, 36, 38, 40, 42
S_PXB = 44
S_PST = 46
S_WAVE = 48
S_SCALE, S_LOG2E = 49, 50
S_EXSV = 52
NSGPR = 84

L_QPART = 0
L_STATS = 3072
L_OPART = 4096
L_OSUM = 7168
L_GPART = 0
L_UPART = 1024
L_HID = 2048
LDS_MAIN = 8192


def add64(g, pair, imm):
    g.e(f"s_add_u32 s{pair}, s{pair}, {imm}")
    g.e(f"s_addc_u32 s{pair+1}, s{pair+1}, 0")

def base64(g, dst, src, soff):
    g.e(f"s_add_u32 s{dst}, s{src}, s{soff}")
    g.e(f"s_addc_u32 s{dst+1}, s{src+1}, 0")


def allreduce_r(g, regs, op="add"):
    ins = {"add": "v_add_f32", "max": "v_max_f32"}[op]
    g.e("s_nop 3")
    for r in regs:
        g.e(f"{ins}_dpp v{r}, v{r}, v{r} row_ror:8 row_mask:0xf bank_mask:0xf")
    for sw in ("v_permlane16_swap_b32", "v_permlane32_swap_b32"):
        for i in range(0, len(regs), 8):
            chunk = regs[i:i + 8]
            for k, r in enumerate(chunk):
                g.e(f"v_mov_b32 v{T+k}, v{r}")
            if len(chunk) < 3:
                g.e("s_nop 1")
            for k, r in enumerate(chunk):
                g.e(f"{sw} v{r}, v{T+k}")
            if len(chunk) < 3:
                g.e("s_nop 1")
            for k, r in enumerate(chunk):
                g.e(f"{ins} v{r}, v{r}, v{T+k}")


S_STAMP = 60
def stamp(g, k):
    if not STAMPS:
        return
    g.e(f"s_memrealtime s[{S_STAMP+2*k}:{S_STAMP+2*k+1}]")

_stamp_id = [0]
def dump_stamps(g, n):
    if not STAMPS:
        return
    _stamp_id[0] += 1
    lid = _stamp_id[0]
    g.e("s_waitcnt lgkmcnt(0)")
    g.e(f"s_lshl_b32 s{S_TMP}, s2, 6")
    g.e(f"s_add_u32 s{S_TMP}, s{S_TMP}, {8<<20}")
    base64(g, S_PXB, S_WS, S_TMP)
    g.e(f"v_lshlrev_b32 v{T}, 2, v{V_W}")
    g.e(f"v_readfirstlane_b32 s{S_TMP2}, v{V_W}")
    g.e("s_nop 3")
    g.e(f"s_cmp_lg_u32 s{S_TMP2}, 0")
    g.e("s_cbranch_scc1 L_nostamp%d" % lid)
    g.e("s_mov_b64 exec, 1")
    g.e(f"v_mov_b32 v{T}, 0")
    for k in range(n):
        g.e(f"v_mov_b32 v{T+1}, s{S_STAMP+2*k}")
        g.e(f"global_store_dword v{T}, v{T+1}, s[{S_PXB}:{S_PXB+1}] offset:{4*k}")
        g.e("s_nop 1")
    g.e("s_mov_b64 exec, -1")
    g.label("L_nostamp%d" % lid)

def zero_regs(g, regs):
    for r in regs:
        g.e(f"v_mov_b32 v{r}, 0")


class Stream:
    def __init__(self, g):
        self.g = g
        self.steps = []
        self.issue_order = []
        self.issued = 0
        self.slot_of = {}
        self.free = list(range(NSLOT))
    def add(self, name, issue, consume):
        self.steps.append(dict(name=name, issue=issue, consume=consume))
    def set_issue_order(self, names):
        self.issue_order = names
    def issue_next(self):
        if self.issued >= len(self.issue_order):
            return
        name = self.issue_order[self.issued]
        st = next(s for s in self.steps if s["name"] == name)
        slot = self.free.pop(0)
        self.slot_of[name] = slot
        self.g.c(f"issue {name} -> slot {slot}")
        st["issue"](slot)
        self.issued += 1
    def fill(self):
        while self.free and self.issued < len(self.issue_order):
            self.issue_next()
    def consume(self, name):
        st = next(s for s in self.steps if s["name"] == name)
        slot = self.slot_of[name]
        self.g.c(f"consume {name} (slot {slot})")
        self.g.wait_tag(name)
        st["consume"](slot)
        self.free.append(slot)
        self.issue_next()


def issue_rows3(g, tag, pair, voff, flags, adv_group, adv_slot):
    def f(slot):
        for hf in range(2):
            for t in range(3):
                r = slot_reg(slot, 12 * hf + 4 * t)
                if adv_group is None:
                    off = t * 128 + hf * 3072
                    g.vm(f"global_load_dwordx4 v[{r}:{r+3}], v{voff}, s[{pair}:{pair+1}] offset:{off} {flags}".rstrip(), tag)
                else:
                    g.vm(f"global_load_dwordx4 v[{r}:{r+3}], v{voff}, s[{pair}:{pair+1}] offset:{t*128} {flags}".rstrip(), tag)
            if adv_group is not None:
                add64(g, pair, adv_group)
        if adv_slot:
            add64(g, pair, adv_slot)
    return f


def gemv_group(g, slot, base_k, nld, accs, mlo, mhi):
    for t in range(nld):
        for q in range(4):
            r = slot_reg(slot, base_k + 4 * t + q)
            g.e(f"v_dot2c_f32_bf16 v{accs[8*t+2*q]}, v{r}, v{mlo}")
            g.e(f"v_dot2c_f32_bf16 v{accs[8*t+2*q+1]}, v{r}, v{mhi}")


def write_part(g, regs, nt, lds_base, wave_stride):
    g.e("s_mov_b64 exec, 0xff")
    for t in range(nt):
        for hf in range(2):
            r = regs[8 * t + 4 * hf]
            g.e(f"ds_write_b128 v{V_LDSW}, v[{r}:{r+3}] offset:{lds_base + 256*t + 16*hf}")
    g.e("s_mov_b64 exec, -1")


def o_phase(g, st, nblocks, groups_per_slot, slots_per_block, tagp, mult_base, store_fn):
    names = []
    for bi in range(nblocks):
        for sb in range(slots_per_block):
            name = f"{tagp}{bi}_{sb}"
            def issue(slot, bi=bi, sb=sb, name=name):
                if sb == 0:
                    g.e(f"s_add_u32 s{S_PST}, s{S_PO}, {bi*512}")
                    g.e(f"s_addc_u32 s{S_PST+1}, s{S_PO+1}, 0")
                for q in range(groups_per_slot):
                    r = slot_reg(slot, 4 * q)
                    g.vm(f"global_load_dwordx4 v[{r}:{r+3}], v{V_OFFO}, s[{S_PST}:{S_PST+1}] {WFLAGS}".rstrip(), name)
                    add64(g, S_PST, 10240)
            def consume(slot, bi=bi, sb=sb):
                accs = [ACC + 8 * bi + k for k in range(8)]
                for q in range(groups_per_slot):
                    m = mult_base + sb * groups_per_slot + q
                    g.e(f"v_cvt_pk_bf16_f32 v{T}, v{m}, 0")
                    g.e(f"v_cvt_pk_bf16_f32 v{T+1}, 0, v{m}")
                    gemv_group(g, slot, 4 * q, 1, accs, T, T + 1)
                if sb == slots_per_block - 1:
                    allreduce_r(g, accs)
                    store_fn(bi, accs)
            st.add(name, issue, consume)
            names.append(name)
    return names


def gen_main():
    g = G()
    e = g.e
    g.label(MAIN)
    stamp(g, 0)
    e("s_load_dwordx16 s[4:19], s[0:1], 0")
    e("s_load_dwordx8 s[20:27], s[0:1], 64")
    e("s_load_dwordx2 s[28:29], s[0:1], 96")
    e(f"s_cmp_ge_u32 s2, {N_ATT+N_FFN}")
    e("s_cbranch_scc1 L_end")
    e(f"v_and_b32 v{T}, 63, v0")
    e(f"v_lshrrev_b32 v{V_W}, 6, v0")
    e(f"v_lshrrev_b32 v{V_R}, 3, v{T}")
    e(f"v_and_b32 v{V_C}, 7, v{T}")
    e(f"s_mov_b32 s{S_SCALE}, {SCALE:#x}")
    e(f"s_mov_b32 s{S_LOG2E}, {LOG2E:#x}")
    e(f"v_mul_u32_u24 v{T+1}, 160, v{V_W}")
    e(f"v_add_u32 v{T+1}, v{T+1}, v{V_R}")
    e(f"v_lshlrev_b32 v{V_OFFX}, 1, v{T+1}")
    e(f"v_lshlrev_b32 v{T+2}, 4, v{V_C}")
    e(f"v_lshlrev_b32 v{V_LDSC}, 5, v{V_C}")
    e(f"v_lshlrev_b32 v{V_LDSR}, 2, v{V_R}")
    e(f"v_mul_u32_u24 v{V_OFFO}, 1280, v{V_R}")
    e(f"v_add_u32 v{V_OFFO}, v{V_OFFO}, v{T+2}")
    e(f"v_lshlrev_b32 v{T+3}, 7, v{V_W}")
    e(f"v_add_u32 v{V_OFFO}, v{V_OFFO}, v{T+3}")
    zero_regs(g, range(ACC, ACC + 24))
    e("s_waitcnt lgkmcnt(0)")
    e(f"s_cmp_ge_u32 s2, {N_ATT}")
    e("s_cbranch_scc1 L_ffn")

    if NOATT:
        e("s_branch L_end")
    g.c("---- attention workgroup")
    e("s_setprio 3")
    e(f"s_lshr_b32 s{S_B}, s2, 5")
    e(f"s_and_b32 s{S_H}, s2, 31")
    e(f"s_mul_i32 s{S_TMP}, s{S_B}, 1280")
    base64(g, S_PXB, S_X, S_TMP)
    e(f"s_mul_i32 s{S_TMP}, s{S_H}, 384")
    base64(g, S_PQ, S_WQ, S_TMP)
    e(f"s_mul_i32 s{S_TMP}, s2, 1572864")
    e(f"s_add_u32 s{S_TMP}, s{S_TMP}, 1179648")
    base64(g, S_PK, S_K, S_TMP)
    base64(g, S_PV, S_V, S_TMP)
    e(f"s_mul_i32 s{S_TMP}, s{S_H}, 245760")
    base64(g, S_PO, S_WO, S_TMP)
    e(f"v_mul_u32_u24 v{V_OFFQ}, 12288, v{T+1}")
    e(f"v_add_u32 v{V_OFFQ}, v{V_OFFQ}, v{T+2}")
    e(f"v_mul_u32_u24 v{V_OFFKV}, 98304, v{V_W}")
    e(f"v_mul_u32_u24 v{T+3}, 384, v{V_R}")
    e(f"v_add_u32 v{V_OFFKV}, v{V_OFFKV}, v{T+3}")
    e(f"v_add_u32 v{V_OFFKV}, v{V_OFFKV}, v{T+2}")
    e(f"v_mul_u32_u24 v{V_LDSW}, 768, v{V_W}")
    e(f"v_add_u32 v{V_LDSW}, v{V_LDSW}, v{V_LDSC}")
    for m in range(20):
        g.vm(f"global_load_ushort v{X+m}, v{V_OFFX}, s[{S_PXB}:{S_PXB+1}] offset:{16*m}", "x")

    st = Stream(g)
    accs = [ACC + k for k in range(24)]
    for n in range(10):
        def consume_q(slot, n=n):
            for hf in range(2):
                e(f"v_lshlrev_b32 v{T}, 16, v{X+2*n+hf}")
                gemv_group(g, slot, 12 * hf, 3, accs, X + 2 * n + hf, T)
        st.add(f"Q{n}", issue_rows3(g, f"Q{n}", S_PQ, V_OFFQ, WFLAGS, 98304, 0), consume_q)
    QR = [X + k for k in range(12)]
    for n in range(16):
        def consume_k(slot, n=n):
            for q in range(4):
                for hf in range(2):
                    for t in range(3):
                        r = slot_reg(slot, 12 * hf + 4 * t + q)
                        d = T + 3 * hf + t
                        if q == 0:
                            e(f"v_dot2_f32_bf16 v{d}, v{r}, v{QR[4*t+q]}, 0")
                        else:
                            e(f"v_dot2c_f32_bf16 v{d}, v{r}, v{QR[4*t+q]}")
            e("s_nop 2")
            for hf in range(2):
                e(f"v_add_f32 v{T+3*hf}, v{T+3*hf}, v{T+3*hf+1}")
            for hf in range(2):
                e(f"v_add_f32 v{T+3*hf}, v{T+3*hf}, v{T+3*hf+2}")
            e("s_nop 0")
            for perm in ("quad_perm:[1,0,3,2]", "quad_perm:[2,3,0,1]", "row_half_mirror"):
                for hf in range(2):
                    e(f"v_add_f32_dpp v{T+3*hf}, v{T+3*hf}, v{T+3*hf} {perm} row_mask:0xf bank_mask:0xf")
                e("s_nop 0")
            for hf in range(2):
                e(f"v_cvt_pk_bf16_f32 v{T+3*hf}, v{T+3*hf}, v{T+3*hf}")
            for hf in range(2):
                e(f"v_lshlrev_b32 v{T+3*hf}, 16, v{T+3*hf}")
            for hf in range(2):
                e(f"v_mul_f32 v{T+3*hf}, s{S_SCALE}, v{T+3*hf}")
            e(f"v_cvt_pk_bf16_f32 v{P+n}, v{T}, v{T+3}")
        st.add(f"K{n}", issue_rows3(g, f"K{n}", S_PK, V_OFFKV, "nt", None, 6144), consume_k)
    for n in range(16):
        def consume_v(slot, n=n):
            e(f"v_and_b32 v{T}, 0xffff, v{P+n}")
            e(f"v_lshlrev_b32 v{T+1}, 16, v{P+n}")
            e(f"v_lshrrev_b32 v{T+2}, 16, v{P+n}")
            e(f"v_and_b32 v{T+3}, 0xffff0000, v{P+n}")
            gemv_group(g, slot, 0, 3, accs, T, T + 1)
            gemv_group(g, slot, 12, 3, accs, T + 2, T + 3)
        st.add(f"V{n}", issue_rows3(g, f"V{n}", S_PV, V_OFFKV, "nt", None, 6144), consume_v)

    order = [f"Q{n}" for n in range(4)] + ["K0", "K1"] + [f"Q{n}" for n in range(4, 10)] \
        + [f"K{n}" for n in range(2, 16)] + [f"V{n}" for n in range(16)]
    st.set_issue_order(order)
    st.fill()
    for n in range(10):
        st.consume(f"Q{n}")
        if n == 0: stamp(g, 7)
        if n == 3: stamp(g, 8)
        if n == 9: stamp(g, 9)
    g.c("q reduce")
    allreduce_r(g, accs)
    write_part(g, accs, 3, L_QPART, 768)
    e("s_waitcnt lgkmcnt(0)")
    e("s_barrier")
    for t in range(3):
        tmp = [ACC + k for k in range(24)] + [T + k for k in range(8)]
        for hf in range(2):
            for w in range(4):
                r = tmp[16 * hf + 4 * w]
                e(f"ds_read_b128 v[{r}:{r+3}], v{V_LDSC} offset:{L_QPART + 768*w + 256*t + 16*hf}")
        e("s_waitcnt lgkmcnt(0)")
        for hf in range(2):
            for k in range(4):
                a, b_, c_, d = (tmp[16 * hf + 4 * w + k] for w in range(4))
                e(f"v_add_f32 v{a}, v{a}, v{b_}")
                e(f"v_add_f32 v{c_}, v{c_}, v{d}")
            for k in range(4):
                a, c_ = tmp[16 * hf + k], tmp[16 * hf + 8 + k]
                e(f"v_add_f32 v{a}, v{a}, v{c_}")
            a = tmp[16 * hf]
            e(f"v_cvt_pk_bf16_f32 v{QR[4*t+2*hf]}, v{a}, v{a+1}")
            e(f"v_cvt_pk_bf16_f32 v{QR[4*t+2*hf+1]}, v{a+2}, v{a+3}")
    zero_regs(g, range(ACC, ACC + 24))
    stamp(g, 1)
    e("s_setprio 0")
    for n in range(16):
        st.consume(f"K{n}")
    stamp(g, 2)
    g.c("softmax")
    e(f"v_lshlrev_b32 v{T}, 16, v{P}")
    e(f"v_and_b32 v{T+1}, 0xffff0000, v{P}")
    e(f"v_max_f32 v{V_M}, v{T}, v{T+1}")
    for n in range(1, 16):
        e(f"v_lshlrev_b32 v{T}, 16, v{P+n}")
        e(f"v_and_b32 v{T+1}, 0xffff0000, v{P+n}")
        e(f"v_max3_f32 v{V_M}, v{V_M}, v{T}, v{T+1}")
    allreduce_r(g, [V_M], "max")
    e(f"v_mov_b32 v{V_LSUM}, 0")
    for n in range(16):
        e(f"v_lshlrev_b32 v{T}, 16, v{P+n}")
        e(f"v_and_b32 v{T+1}, 0xffff0000, v{P+n}")
        e(f"v_sub_f32 v{T}, v{T}, v{V_M}")
        e(f"v_sub_f32 v{T+1}, v{T+1}, v{V_M}")
        e(f"v_mul_f32 v{T}, s{S_LOG2E}, v{T}")
        e(f"v_mul_f32 v{T+1}, s{S_LOG2E}, v{T+1}")
        e(f"v_exp_f32 v{T}, v{T}")
        e(f"v_exp_f32 v{T+1}, v{T+1}")
        e("s_nop 0")
        e(f"v_add_f32 v{V_LSUM}, v{V_LSUM}, v{T}")
        e(f"v_add_f32 v{V_LSUM}, v{V_LSUM}, v{T+1}")
    allreduce_r(g, [V_LSUM])
    e(f"v_mov_b32 v{T}, v{V_M}")
    e(f"v_mov_b32 v{T+1}, v{V_LSUM}")
    e(f"v_lshlrev_b32 v{T+2}, 3, v{V_W}")
    e("s_mov_b64 exec, 1")
    e(f"ds_write_b64 v{T+2}, v[{T}:{T+1}] offset:{L_STATS}")
    e("s_mov_b64 exec, -1")
    e("s_waitcnt lgkmcnt(0)")
    e("s_barrier")
    e(f"v_mov_b32 v{T+8}, 0")
    e(f"ds_read_b128 v[{T}:{T+3}], v{T+8} offset:{L_STATS}")
    e(f"ds_read_b128 v[{T+4}:{T+7}], v{T+8} offset:{L_STATS+16}")
    e("s_waitcnt lgkmcnt(0)")
    e(f"v_max3_f32 v{V_T2}, v{T}, v{T+2}, v{T+4}")
    e(f"v_max_f32 v{V_T2}, v{V_T2}, v{T+6}")
    for k in (0, 2, 4, 6):
        e(f"v_sub_f32 v{T+k}, v{T+k}, v{V_T2}")
        e(f"v_mul_f32 v{T+k}, s{S_LOG2E}, v{T+k}")
        e(f"v_exp_f32 v{T+k}, v{T+k}")
    e("s_nop 0")
    e(f"v_mul_f32 v{V_LSUM}, v{T}, v{T+1}")
    e(f"v_fmac_f32 v{V_LSUM}, v{T+2}, v{T+3}")
    e(f"v_fmac_f32 v{V_LSUM}, v{T+4}, v{T+5}")
    e(f"v_fmac_f32 v{V_LSUM}, v{T+6}, v{T+7}")
    e(f"v_rcp_f32 v{V_LSUM}, v{V_LSUM}")
    e(f"v_mov_b32 v{V_M}, v{V_T2}")
    for n in range(16):
        e(f"v_lshlrev_b32 v{T}, 16, v{P+n}")
        e(f"v_and_b32 v{T+1}, 0xffff0000, v{P+n}")
        e(f"v_sub_f32 v{T}, v{T}, v{V_M}")
        e(f"v_sub_f32 v{T+1}, v{T+1}, v{V_M}")
        e(f"v_mul_f32 v{T}, s{S_LOG2E}, v{T}")
        e(f"v_mul_f32 v{T+1}, s{S_LOG2E}, v{T+1}")
        e(f"v_exp_f32 v{T}, v{T}")
        e(f"v_exp_f32 v{T+1}, v{T+1}")
        e("s_nop 0")
        e(f"v_mul_f32 v{T}, v{T}, v{V_LSUM}")
        e(f"v_mul_f32 v{T+1}, v{T+1}, v{V_LSUM}")
        e(f"v_cvt_pk_bf16_f32 v{P+n}, v{T}, v{T+1}")
    e(f"s_mul_i32 s{S_TMP}, s2, 2560")
    base64(g, S_PQ, S_WS, S_TMP)
    def store_att(bi, accs):
        e(f"v_lshlrev_b32 v{T}, 8, v{V_W}")
        e(f"v_add_u32 v{T}, v{T}, v{V_LDSC}")
        e("s_mov_b64 exec, 0xff")
        g.vm(f"global_store_dwordx4 v{T}, v[{accs[0]}:{accs[3]}], s[{S_PQ}:{S_PQ+1}] offset:{bi*1024}", "st")
        g.vm(f"global_store_dwordx4 v{T}, v[{accs[4]}:{accs[7]}], s[{S_PQ}:{S_PQ+1}] offset:{bi*1024+16}", "st")
        e("s_mov_b64 exec, -1")
    OM = [X + k for k in range(24)]
    onames = o_phase(g, st, 3, 6, 4, "O", X, store_att)
    st.issue_order = st.issue_order + onames[:8]
    st.fill()
    stamp(g, 3)
    for n in range(16):
        st.consume(f"V{n}")
    stamp(g, 4)
    g.c("o reduce")
    allreduce_r(g, accs)
    write_part(g, accs, 3, L_OPART, 768)
    e("s_waitcnt lgkmcnt(0)")
    e("s_barrier")
    e(f"v_lshlrev_b32 v{T}, 2, v0")
    e("v_cmp_gt_u32 vcc, 192, v0")
    e(f"s_and_saveexec_b64 s[{S_EXSV}:{S_EXSV+1}], vcc")
    for w in range(4):
        e(f"ds_read_b32 v{T+1+w}, v{T} offset:{L_OPART + 768*w}")
    e("s_waitcnt lgkmcnt(0)")
    e(f"v_add_f32 v{T+1}, v{T+1}, v{T+2}")
    e(f"v_add_f32 v{T+3}, v{T+3}, v{T+4}")
    e(f"v_add_f32 v{T+1}, v{T+1}, v{T+3}")
    e(f"ds_write_b32 v{T}, v{T+1} offset:{L_OSUM}")
    e(f"s_mov_b64 exec, s[{S_EXSV}:{S_EXSV+1}]")
    e("s_waitcnt lgkmcnt(0)")
    e("s_barrier")
    for m in range(24):
        e(f"ds_read_b32 v{OM[m]}, v{V_LDSR} offset:{L_OSUM + 32*m}")
    zero_regs(g, range(ACC, ACC + 24))
    e("s_waitcnt lgkmcnt(0)")
    stamp(g, 5)
    e(f"v_readfirstlane_b32 s{S_WAVE}, v{V_W}")
    e("s_nop 3")
    e(f"s_cmp_ge_u32 s{S_WAVE}, 2")
    e("s_cbranch_scc1 L_att_b")
    gA = g
    gB = G(); gB.L = []; gB.vmq = list(g.vmq)
    stB = copy.copy(st)
    stA_state = (list(st.free), dict(st.slot_of), st.issued, list(st.issue_order))
    st.issue_order = st.issue_order + onames[8:]
    for nm in onames:
        st.consume(nm)
    stamp(g, 6)
    dump_stamps(g, 10)
    e("s_branch L_end")
    g.label("L_att_b")
    st.free, st.slot_of, st.issued, st.issue_order = list(stA_state[0]), dict(stA_state[1]), stA_state[2], list(stA_state[3])
    g.vmq = list(gB.vmq)
    for nm in onames[:8]:
        st.consume(nm)
    e("s_branch L_end")

    g.label("L_ffn")
    g.vmq = []
    g.c("---- FFN workgroup (b, j)")
    oldT = T
    set_layout("ffn")
    e("s_setprio 2")
    e(f"v_mov_b32 v{T+1}, v{oldT+1}")
    e(f"v_mov_b32 v{T+2}, v{oldT+2}")
    e(f"s_sub_u32 s{S_TMP}, s2, {N_ATT}")
    e(f"s_mul_i32 s{S_B}, s{S_TMP}, 43691")
    e(f"s_lshr_b32 s{S_B}, s{S_B}, 20")
    e(f"s_mul_i32 s{S_TMP2}, s{S_B}, 24")
    e(f"s_sub_u32 s{S_H}, s{S_TMP}, s{S_TMP2}")
    e(f"s_mul_i32 s{S_TMP}, s{S_B}, 1280")
    base64(g, S_PXB, S_X, S_TMP)
    e(f"s_mul_i32 s{S_TMP}, s{S_H}, 128")
    base64(g, S_PQ, S_WG, S_TMP)
    base64(g, S_PU, S_WU, S_TMP)
    e(f"s_mul_i32 s{S_TMP}, s{S_H}, 81920")
    base64(g, S_PO, S_WD, S_TMP)
    e(f"v_mul_u32_u24 v{V_OFFQ}, 3072, v{T+1}")
    e(f"v_add_u32 v{V_OFFQ}, v{V_OFFQ}, v{T+2}")
    e(f"v_mul_u32_u24 v{V_LDSW}, 256, v{V_W}")
    e(f"v_add_u32 v{V_LDSW}, v{V_LDSW}, v{V_LDSC}")
    for m in range(20):
        g.vm(f"global_load_ushort v{X+m}, v{V_OFFX}, s[{S_PXB}:{S_PXB+1}] offset:{16*m}", "x")
    st = Stream(g)
    for n in range(10):
        def issue_f1(slot, n=n):
            for hf in range(2):
                r = slot_reg(slot, 4 * hf)
                g.vm(f"global_load_dwordx4 v[{r}:{r+3}], v{V_OFFQ}, s[{S_PQ}:{S_PQ+1}] {WFLAGS}".rstrip(), f"F{n}")
                r = slot_reg(slot, 8 + 4 * hf)
                g.vm(f"global_load_dwordx4 v[{r}:{r+3}], v{V_OFFQ}, s[{S_PU}:{S_PU+1}] {WFLAGS}".rstrip(), f"F{n}")
                add64(g, S_PQ, 24576)
                add64(g, S_PU, 24576)
        def consume_f1(slot, n=n):
            for hf in range(2):
                e(f"v_lshlrev_b32 v{T}, 16, v{X+2*n+hf}")
                gemv_group(g, slot, 4 * hf, 1, [ACC + k for k in range(8)], X + 2 * n + hf, T)
                gemv_group(g, slot, 8 + 4 * hf, 1, [ACC + 8 + k for k in range(8)], X + 2 * n + hf, T)
        st.add(f"F{n}", issue_f1, consume_f1)
    e(f"s_lshl_b32 s{S_TMP}, s{S_H}, 3")
    e(f"s_add_u32 s{S_TMP}, s{S_TMP}, s{S_B}")
    e(f"s_mul_i32 s{S_TMP}, s{S_TMP}, 2560")
    e(f"s_add_u32 s{S_TMP}, s{S_TMP}, {FFN_OFF}")
    base64(g, S_PK, S_WS, S_TMP)
    def store_ffn(bi, accs):
        e(f"v_lshlrev_b32 v{T}, 8, v{V_W}")
        e(f"v_add_u32 v{T}, v{T}, v{V_LDSC}")
        e("s_mov_b64 exec, 0xff")
        g.vm(f"global_store_dwordx4 v{T}, v[{accs[0]}:{accs[3]}], s[{S_PK}:{S_PK+1}] offset:{bi*1024}", "st")
        g.vm(f"global_store_dwordx4 v{T}, v[{accs[4]}:{accs[7]}], s[{S_PK}:{S_PK+1}] offset:{bi*1024+16}", "st")
        e("s_mov_b64 exec, -1")
    fnames = o_phase(g, st, 3, 4, 2, "D", X, store_ffn)
    st.set_issue_order([f"F{n}" for n in range(10)] + fnames[:4])
    st.fill()
    for n in range(10):
        st.consume(f"F{n}")
        if n == 0: stamp(g, 3)
        if n == 4: stamp(g, 4)
    stamp(g, 1)
    g.c("ffn reduce")
    allreduce_r(g, [ACC + k for k in range(16)])
    e("s_mov_b64 exec, 0xff")
    for hf in range(2):
        e(f"ds_write_b128 v{V_LDSW}, v[{ACC+4*hf}:{ACC+4*hf+3}] offset:{L_GPART + 16*hf}")
        e(f"ds_write_b128 v{V_LDSW}, v[{ACC+8+4*hf}:{ACC+8+4*hf+3}] offset:{L_UPART + 16*hf}")
    e("s_mov_b64 exec, -1")
    e("s_waitcnt lgkmcnt(0)")
    e("s_barrier")
    e(f"v_lshlrev_b32 v{T}, 2, v0")
    e("v_cmp_gt_u32 vcc, 64, v0")
    e(f"s_and_saveexec_b64 s[{S_EXSV}:{S_EXSV+1}], vcc")
    for w in range(4):
        e(f"ds_read_b32 v{T+1+w}, v{T} offset:{L_GPART + 256*w}")
        e(f"ds_read_b32 v{T+5+w}, v{T} offset:{L_UPART + 256*w}")
    e("s_waitcnt lgkmcnt(0)")
    e(f"v_add_f32 v{T+1}, v{T+1}, v{T+2}")
    e(f"v_add_f32 v{T+3}, v{T+3}, v{T+4}")
    e(f"v_add_f32 v{T+5}, v{T+5}, v{T+6}")
    e(f"v_add_f32 v{T+7}, v{T+7}, v{T+8}")
    e(f"v_add_f32 v{T+1}, v{T+1}, v{T+3}")
    e(f"v_add_f32 v{T+5}, v{T+5}, v{T+7}")
    e(f"v_cvt_pk_bf16_f32 v{T+2}, v{T+1}, v{T+5}")
    e(f"v_lshlrev_b32 v{T+1}, 16, v{T+2}")
    e(f"v_and_b32 v{T+5}, 0xffff0000, v{T+2}")
    e(f"v_mul_f32 v{T+2}, v{T+1}, v{T+1}")
    e(f"v_mul_f32 v{T+2}, v{T+2}, v{T+1}")
    e(f"v_mov_b32 v{T+3}, {f32bits(0.044715):#x}")
    e(f"v_fma_f32 v{T+2}, v{T+3}, v{T+2}, v{T+1}")
    e(f"v_mul_f32 v{T+2}, {f32bits(0.7978845608028654):#x}, v{T+2}")
    e(f"v_mul_f32 v{T+2}, {f32bits(2*1.4426950408889634):#x}, v{T+2}")
    e(f"v_exp_f32 v{T+2}, v{T+2}")
    e("s_nop 0")
    e(f"v_add_f32 v{T+2}, 1.0, v{T+2}")
    e(f"v_rcp_f32 v{T+2}, v{T+2}")
    e("s_nop 0")
    e(f"v_fma_f32 v{T+2}, -2.0, v{T+2}, 2.0")
    e(f"v_mul_f32 v{T+3}, 0.5, v{T+1}")
    e(f"v_mul_f32 v{T+2}, v{T+3}, v{T+2}")
    e(f"v_cvt_pk_bf16_f32 v{T+2}, v{T+2}, v{T+2}")
    e(f"v_lshlrev_b32 v{T+2}, 16, v{T+2}")
    e(f"v_mul_f32 v{T+2}, v{T+2}, v{T+5}")
    e(f"v_cvt_pk_bf16_f32 v{T+2}, v{T+2}, v{T+2}")
    e(f"v_lshlrev_b32 v{T+2}, 16, v{T+2}")
    e(f"ds_write_b32 v{T}, v{T+2} offset:{L_HID}")
    e(f"s_mov_b64 exec, s[{S_EXSV}:{S_EXSV+1}]")
    e("s_waitcnt lgkmcnt(0)")
    e("s_barrier")
    for m in range(8):
        e(f"ds_read_b32 v{X+m}, v{V_LDSR} offset:{L_HID + 32*m}")
    zero_regs(g, range(ACC, ACC + 24))
    e("s_waitcnt lgkmcnt(0)")
    e(f"v_readfirstlane_b32 s{S_WAVE}, v{V_W}")
    e("s_nop 3")
    e(f"s_cmp_ge_u32 s{S_WAVE}, 2")
    e("s_cbranch_scc1 L_ffn_b")
    saved = (list(st.free), dict(st.slot_of), st.issued, list(st.issue_order), list(g.vmq))
    st.issue_order = st.issue_order + fnames[4:]
    st.fill()
    for nm in fnames:
        st.consume(nm)
    stamp(g, 2)
    dump_stamps(g, 5)
    e("s_branch L_end")
    g.label("L_ffn_b")
    st.free, st.slot_of, st.issued, st.issue_order, g.vmq = list(saved[0]), dict(saved[1]), saved[2], list(saved[3]), list(saved[4])
    for nm in fnames[:4]:
        st.consume(nm)
    g.label("L_end")
    e("s_endpgm")
    set_layout("att")
    return g


def gen_final():
    g = G()
    e = g.e
    g.label(FINAL)
    e("s_load_dwordx2 s[4:5], s[0:1], 0")
    e("s_load_dwordx2 s[6:7], s[0:1], 72")
    e("s_load_dwordx2 s[8:9], s[0:1], 80")
    e("s_load_dwordx2 s[10:11], s[0:1], 96")
    e("s_cmp_ge_u32 s2, 40")
    e("s_cbranch_scc1 L_fend")
    e("s_mul_i32 s12, s2, 52429")
    e("s_lshr_b32 s12, s12, 18")
    e("s_mul_i32 s13, s12, 5")
    e("s_sub_u32 s13, s2, s13")
    e("v_and_b32 v1, 31, v0")
    e("v_lshrrev_b32 v2, 5, v0")
    e("v_and_b32 v3, 63, v0")
    e("s_waitcnt lgkmcnt(0)")
    e("s_mul_i32 s14, s12, 1280")
    e("s_add_u32 s4, s4, s14")
    e("s_addc_u32 s5, s5, 0")
    e("v_lshlrev_b32 v4, 5, v3")
    e("v_mov_b32 v20, 0")
    e("v_cmp_gt_u32 vcc, 40, v3")
    e("s_and_saveexec_b64 s[16:17], vcc")
    e("global_load_dwordx4 v[8:11], v4, s[4:5]")
    e("global_load_dwordx4 v[12:15], v4, s[4:5] offset:16")
    e("global_load_dwordx4 v[16:19], v4, s[6:7]")
    e("global_load_dwordx4 v[24:27], v4, s[6:7] offset:16")
    e("s_mov_b64 exec, s[16:17]")
    e("s_mul_i32 s14, s12, 81920")
    e("s_lshl_b32 s15, s13, 9")
    e("s_add_u32 s14, s14, s15")
    e("s_add_u32 s18, s10, s14")
    e("s_addc_u32 s19, s11, 0")
    e("v_mul_u32_u24 v5, 10240, v2")
    e("v_lshlrev_b32 v6, 4, v1")
    e("v_add_u32 v5, v5, v6")
    e("global_load_dwordx4 v[32:35], v5, s[18:19]")
    e("global_load_dwordx4 v[36:39], v5, s[18:19] offset:2560")
    e("v_add_u32 v7, 5120, v5")
    e("global_load_dwordx4 v[40:43], v7, s[18:19]")
    e("global_load_dwordx4 v[44:47], v7, s[18:19] offset:2560")
    e(f"s_mul_i32 s14, s12, 2560")
    e("s_add_u32 s14, s14, s15")
    e(f"s_add_u32 s14, s14, {FFN_OFF}")
    e("s_add_u32 s20, s10, s14")
    e("s_addc_u32 s21, s11, 0")
    e("v_mul_u32_u24 v5, 61440, v2")
    e("v_add_u32 v5, v5, v6")
    e("global_load_dwordx4 v[48:51], v5, s[20:21]")
    e("v_add_u32 v7, 20480, v5")
    e("global_load_dwordx4 v[52:55], v7, s[20:21]")
    e("v_add_u32 v7, 40960, v5")
    e("global_load_dwordx4 v[56:59], v7, s[20:21]")
    e("s_waitcnt vmcnt(7)")
    e("s_and_saveexec_b64 s[16:17], vcc")
    for k in range(8):
        xr = (8 + k) if k < 4 else (12 + k - 4)
        wr = (16 + k) if k < 4 else (24 + k - 4)
        e(f"v_lshlrev_b32 v21, 16, v{xr}")
        e(f"v_lshlrev_b32 v22, 16, v{wr}")
        e(f"v_mul_f32 v21, v21, v22")
        e(f"v_and_b32 v22, 0xffff0000, v{xr}")
        e(f"v_and_b32 v23, 0xffff0000, v{wr}")
        e(f"v_mul_f32 v22, v22, v23")
        e(f"v_cvt_pk_bf16_f32 v21, v21, v22")
        e(f"v_lshlrev_b32 v22, 16, v21")
        e(f"v_and_b32 v21, 0xffff0000, v21")
        e(f"v_add_f32 v20, v20, v22")
        e(f"v_add_f32 v20, v20, v21")
    e("s_mov_b64 exec, s[16:17]")
    e("s_nop 1")
    for sh in (8, 4, 2, 1):
        e(f"v_add_f32_dpp v20, v20, v20 row_ror:{sh} row_mask:0xf bank_mask:0xf")
        e("s_nop 1")
    e("v_readlane_b32 s22, v20, 0")
    e("v_readlane_b32 s23, v20, 16")
    e("v_readlane_b32 s24, v20, 32")
    e("v_readlane_b32 s25, v20, 48")
    e("s_nop 1")
    e("v_mov_b32 v20, s22")
    e("v_add_f32 v20, s23, v20")
    e("v_add_f32 v20, s24, v20")
    e("v_add_f32 v20, s25, v20")
    e("v_cvt_pk_bf16_f32 v20, v20, v20")
    e("v_lshlrev_b32 v20, 16, v20")
    e(f"v_mul_f32 v21, {f32bits(-1.4426950408889634):#x}, v20")
    e("v_exp_f32 v21, v21")
    e("s_nop 0")
    e("v_add_f32 v21, 1.0, v21")
    e("v_rcp_f32 v21, v21")
    e("s_nop 0")
    e("v_cvt_pk_bf16_f32 v21, v21, v21")
    e("v_lshlrev_b32 v28, 16, v21")
    e("v_sub_f32 v21, 1.0, v28")
    e("v_cvt_pk_bf16_f32 v21, v21, v21")
    e("v_lshlrev_b32 v29, 16, v21")
    e("s_waitcnt vmcnt(0)")
    for k in range(4):
        e(f"v_add_f32 v{32+k}, v{32+k}, v{36+k}")
        e(f"v_add_f32 v{40+k}, v{40+k}, v{44+k}")
        e(f"v_add_f32 v{48+k}, v{48+k}, v{52+k}")
    for k in range(4):
        e(f"v_add_f32 v{32+k}, v{32+k}, v{40+k}")
        e(f"v_add_f32 v{48+k}, v{48+k}, v{56+k}")
    e("v_lshlrev_b32 v5, 9, v2")
    e("v_add_u32 v5, v5, v6")
    e("ds_write_b128 v5, v[32:35]")
    e("ds_write_b128 v5, v[48:51] offset:4096")
    e("s_waitcnt lgkmcnt(0)")
    e("s_barrier")
    e("v_cmp_gt_u32 vcc, 128, v0")
    e("s_and_saveexec_b64 s[16:17], vcc")
    e("s_cbranch_execz L_fend")
    e("v_lshlrev_b32 v5, 2, v0")
    for p in range(8):
        e(f"ds_read_b32 v{32+p}, v5 offset:{512*p}")
        e(f"ds_read_b32 v{40+p}, v5 offset:{4096+512*p}")
    e("s_waitcnt lgkmcnt(0)")
    for base in (32, 40):
        e(f"v_add_f32 v{base}, v{base}, v{base+1}")
        e(f"v_add_f32 v{base+2}, v{base+2}, v{base+3}")
        e(f"v_add_f32 v{base+4}, v{base+4}, v{base+5}")
        e(f"v_add_f32 v{base+6}, v{base+6}, v{base+7}")
        e(f"v_add_f32 v{base}, v{base}, v{base+2}")
        e(f"v_add_f32 v{base+4}, v{base+4}, v{base+6}")
        e(f"v_add_f32 v{base}, v{base}, v{base+4}")
    e("v_cvt_pk_bf16_f32 v33, v32, v40")
    e("v_lshlrev_b32 v32, 16, v33")
    e("v_and_b32 v40, 0xffff0000, v33")
    e("v_mul_f32 v32, v28, v32")
    e("v_mul_f32 v40, v29, v40")
    e("v_cvt_pk_bf16_f32 v33, v32, v40")
    e("v_lshlrev_b32 v32, 16, v33")
    e("v_and_b32 v40, 0xffff0000, v33")
    e("v_add_f32 v32, v32, v40")
    e("v_cvt_pk_bf16_f32 v32, v32, v32")
    e("s_mul_i32 s14, s12, 1280")
    e("s_lshl_b32 s15, s13, 8")
    e("s_add_u32 s14, s14, s15")
    e("s_add_u32 s8, s8, s14")
    e("s_addc_u32 s9, s9, 0")
    e("v_lshlrev_b32 v5, 1, v0")
    e("global_store_short v5, v32, s[8:9]")
    g.label("L_fend")
    e("s_endpgm")
    return g


HEADER = """; Kernarg layout for this problem (104 bytes, ptrs only, base s[0:1]):
"""

def kd(name, nv, ns):
    return f""".amdhsa_kernel {name}
  .amdhsa_next_free_vgpr {nv}
  .amdhsa_next_free_sgpr {ns}
  .amdhsa_accum_offset {(nv+3)//4*4}
  .amdhsa_group_segment_fixed_size 0
  .amdhsa_kernarg_size 104
  .amdhsa_user_sgpr_count 2
  .amdhsa_user_sgpr_kernarg_segment_ptr 1
  .amdhsa_system_sgpr_workgroup_id_x 1
  .amdhsa_float_denorm_mode_32 3
  .amdhsa_float_denorm_mode_16_64 3
.end_amdhsa_kernel
"""

def main(out):
    gm = gen_main()
    gf = gen_final()
    s = HEADER
    s += f"; @launch kernel={MAIN} grid=({N_ATT+(0 if NOFFN else N_FFN)},1,1) block=(256,1,1) lds={LDS_MAIN}\n"
    s += f"; @launch kernel={FINAL} grid=(40,1,1) block=(256,1,1) lds=8192\n"
    s += '.amdgcn_target "amdgcn-amd-amdhsa--gfx950"\n.text\n'
    s += f".globl {MAIN}\n.p2align 8\n.type {MAIN},@function\n"
    s += "\n".join(gm.L) + "\n"
    s += f".globl {FINAL}\n.p2align 8\n.type {FINAL},@function\n"
    s += "\n".join(gf.L) + "\n"
    s += '.section .rodata,"a"\n.p2align 6\n'
    s += kd(MAIN, NVGPR, NSGPR)
    s += ".p2align 6\n"
    s += kd(FINAL, 64, 32)
    open(out, "w").write(s)
    print("wrote", out, "lines:", s.count("\n"))

if __name__ == "__main__":
    main(sys.argv[1] if len(sys.argv) > 1 else "out.s")
```
